```python
import torch

def _softmax(x, axis=-1):
    return torch.softmax(x, dim=axis)
def _gelu(x):
    return torch.nn.functional.gelu(x, approximate="tanh")
def _silu(x):
    return torch.nn.functional.silu(x)
def _sigmoid(x):
    return torch.sigmoid(x)
def _layernorm(x, axis=-1, eps=1e-5):
    m = x.mean(dim=axis, keepdim=True)
    v = x.var(dim=axis, keepdim=True, unbiased=False)
    return (x - m) / torch.sqrt(v + eps)
def _scatter_add(tgt, idx, src, axis=0):
    return tgt.clone().index_add_(axis, idx, src)
def _segment_sum(src, seg, n):
    out = torch.zeros((n,) + src.shape[1:], dtype=src.dtype)
    return out.index_add_(0, seg, src)
def _pad(x, pw):
    flat = tuple(v for pair in reversed(pw) for v in pair)
    return torch.nn.functional.pad(x, flat)

kernel_name = 'interleave_layers__mha_block__glu_gated_glu__prompt'

def setup_inputs():

    _w = (lambda a: (lambda t: t.to(torch.bfloat16) if t.is_floating_point() else t)(torch.as_tensor(a)))
    def _A_setup():
        B, S, D, H = 1, 2048, 448, 16
        return {
            "x": _w((lambda *s: torch.randn(*s, dtype=torch.bfloat16) * 0.05)(B, S, D)),
            "wqkv": _w((lambda *s: torch.randn(*s, dtype=torch.bfloat16) * 0.05)(D, 3 * D)),
            "wo": _w((lambda *s: torch.randn(*s, dtype=torch.bfloat16) * 0.05)(D, D)),
        }
    _A_in = _A_setup()

    def _B_setup():
        B, S, D, F = 1, 2048, 448, 1792
        return {
            "x": _w((lambda *s: torch.randn(*s, dtype=torch.bfloat16) * 0.05)(B, S, D)),
            "w_gate": _w((lambda *s: torch.randn(*s, dtype=torch.bfloat16) * 0.05)(D, F)),
            "w_up": _w((lambda *s: torch.randn(*s, dtype=torch.bfloat16) * 0.05)(D, F)),
            "w_down": _w((lambda *s: torch.randn(*s, dtype=torch.bfloat16) * 0.05)(F, D)),
        }
    _B_in = _B_setup()

    return {
        "A_x": _A_in["x"],
        "A_wqkv": _A_in["wqkv"],
        "A_wo": _A_in["wo"],
        "B_x": _B_in["x"],
        "B_w_gate": _B_in["w_gate"],
        "B_w_up": _B_in["w_up"],
        "B_w_down": _B_in["w_down"],
    }

def reference(A_x, A_wqkv, A_wo, B_x, B_w_gate, B_w_up, B_w_down):
    def _A_ref(x, wqkv, wo):
        B, S, D = x.shape
        H = 16
        Dh = D // H
        qkv = (lambda x, *d: x.permute(*d))((x @ wqkv).reshape(B, S, 3, H, Dh), 2, 0, 3, 1, 4)
        q, k, v = qkv[0], qkv[1], qkv[2]
        scores = torch.einsum("bhqd,bhkd->bhqk", q, k) * (Dh ** -0.5)
        p = _softmax(scores, axis=-1)
        o = torch.einsum("bhqk,bhkd->bhqd", p, v)
        return (lambda x, *d: x.permute(*d))(o, 0, 2, 1, 3).reshape(B, S, D) @ wo

    def _B_ref(x, w_gate, w_up, w_down):
        g = torch.einsum("bsd,df->bsf", x, w_gate)
        u = torch.einsum("bsd,df->bsf", x, w_up)
        h = _sigmoid(g) * u
        return torch.einsum("bsf,fd->bsd", h, w_down)

    x = A_x
    x = x + _A_ref(_layernorm(x, axis=-1), A_wqkv, A_wo)
    x = x + _B_ref(_layernorm(x, axis=-1), B_w_gate, B_w_up, B_w_down)
    x = x + _A_ref(_layernorm(x, axis=-1), A_wqkv, A_wo)
    x = x + _B_ref(_layernorm(x, axis=-1), B_w_gate, B_w_up, B_w_down)
    return x
```

```python
class Asm:
    def __init__(self):
        self.lines = []
        self.vmq = []
        self.lgq = []
        self.nlabel = 0

    def __call__(self, s):
        self.lines.append("    " + s)

    def raw(self, s):
        self.lines.append(s)

    def label(self, l):
        self.lines.append(l + ":")

    def comment(self, s):
        self.lines.append("    ; " + s)

    def newlabel(self, base="L"):
        self.nlabel += 1
        return "%s_%d" % (base, self.nlabel)

    def vm(self, s, tag=None):
        self(s)
        self.vmq.append(tag)

    def lg(self, s, tag=None):
        self(s)
        self.lgq.append(tag)

    def wait_vm(self, tag=None, allow=None):
        if tag is None:
            n = 0
        else:
            idx = max((i for i, t in enumerate(self.vmq) if t == tag), default=-1)
            if idx < 0:
                return
            n = len(self.vmq) - 1 - idx
        if n > 63:
            n = 63
        self("s_waitcnt vmcnt(%d)" % n)
        self.vmq = self.vmq[len(self.vmq) - n:] if n else []

    def wait_lg(self, tag=None):
        if tag is None:
            n = 0
        else:
            idx = max((i for i, t in enumerate(self.lgq) if t == tag), default=-1)
            if idx < 0:
                return
            n = len(self.lgq) - 1 - idx
        if n > 15:
            n = 15
        self("s_waitcnt lgkmcnt(%d)" % n)
        self.lgq = self.lgq[len(self.lgq) - n:] if n else []

    def text(self):
        return "\n".join(self.lines) + "\n"


def vr(b, n=1):
    return "v%d" % b if n == 1 else "v[%d:%d]" % (b, b + n - 1)


def sr(b, n=1):
    return "s%d" % b if n == 1 else "s[%d:%d]" % (b, b + n - 1)


def kernel_header(name):
    return [
        ".globl %s" % name,
        ".p2align 8",
        ".type %s,@function" % name,
        "%s:" % name,
    ]


def kernel_desc(name, nvgpr, nsgpr=96, kernarg=80):
    acc = (nvgpr + 3) // 4 * 4
    return [
        ".amdhsa_kernel %s" % name,
        "  .amdhsa_next_free_vgpr %d" % nvgpr,
        "  .amdhsa_next_free_sgpr %d" % nsgpr,
        "  .amdhsa_accum_offset %d" % acc,
        "  .amdhsa_group_segment_fixed_size 0",
        "  .amdhsa_kernarg_size %d" % kernarg,
        "  .amdhsa_user_sgpr_count 2",
        "  .amdhsa_user_sgpr_kernarg_segment_ptr 1",
        "  .amdhsa_system_sgpr_workgroup_id_x 1",
        "  .amdhsa_float_denorm_mode_32 3",
        "  .amdhsa_float_denorm_mode_16_64 3",
        ".end_amdhsa_kernel",
    ]
```

```python
from asmlib import Asm, vr, sr
from gemm import S, NH, DH, WS_Q, WS_K, WS_V, WS_O, ARG_WS, emit_srd, f32bits
import math

NWG = 256
STAGE = 32768


def attn_kernel(name):
    a = Asm()
    Q = 0
    O = 8
    SS = [24, 56]
    P = 88
    KF = [104, 120]
    VF = [136, 152]
    M = 168
    NM = 170
    AL = 172
    T = 174
    KA = [182, 184]
    VA = 186
    VD = 188
    V_LANE = 189
    V_Q = 190
    NV = 200
    S_KV, S_QS, S_OS = 8, 12, 16
    S_PWS = 20
    S_WAVE, S_HEAD, S_QB, S_TMP, S_DOFF, S_M0, S_T2 = 22, 23, 24, 25, 26, 27, 28
    S_C = 30

    c_scale = (DH ** -0.5) * math.log2(math.e)

    a.raw("; ---- %s" % name)
    a.raw(".globl %s" % name)
    a.raw(".p2align 8")
    a.raw(".type %s,@function" % name)
    a.label(name)
    Lend = name + "_end"
    a("s_cmp_ge_u32 s2, %d" % NWG)
    a("s_cbranch_scc1 %s" % Lend)
    a("s_load_dwordx2 %s, s[0:1], %d" % (sr(S_PWS, 2), ARG_WS * 8))
    a("v_and_b32 %s, 63, v0" % vr(V_LANE))
    a("v_lshrrev_b32 %s, 6, v0" % vr(T))
    a("s_nop 0")
    a("v_readfirstlane_b32 %s, %s" % (sr(S_WAVE), vr(T)))
    a("s_and_b32 %s, s2, 7" % sr(S_HEAD))
    a("s_lshl_b32 %s, %s, 1" % (sr(S_HEAD), sr(S_HEAD)))
    a("s_bfe_u32 %s, s2, 0x10003" % sr(S_TMP))
    a("s_add_u32 %s, %s, %s" % (sr(S_HEAD), sr(S_HEAD), sr(S_TMP)))
    a("s_lshr_b32 %s, s2, 4" % sr(S_QB))
    a("s_mov_b32 %s, 0x%08x" % (sr(S_C), f32bits(c_scale)))
    a("s_mov_b32 %s, 0x%08x" % (sr(S_C + 1), f32bits(c_scale)))
    a("s_waitcnt lgkmcnt(0)")
    emit_srd(a, S_KV, S_PWS, WS_K, 4 << 20)
    emit_srd(a, S_QS, S_PWS, WS_Q, 2 << 20)
    emit_srd(a, S_OS, S_PWS, WS_O, S * 448 * 2)

    a("v_and_b32 %s, 3, %s" % (vr(T), vr(V_LANE)))
    a("v_bfe_u32 %s, %s, 3, 2" % (vr(T + 1), vr(V_LANE)))
    a("s_bfe_u32 %s, %s, 0x10001" % (sr(S_TMP), sr(S_WAVE)))
    a("s_cmp_eq_u32 %s, 0" % sr(S_TMP))
    a("s_cselect_b32 %s, 3, 0" % sr(S_T2))
    a("v_and_b32 %s, %s, %s" % (vr(T + 1), sr(S_T2), vr(T + 1)))
    a("v_xor_b32 %s, %s, %s" % (vr(T), vr(T), vr(T + 1)))
    a("v_lshrrev_b32 %s, 2, %s" % (vr(T + 1), vr(V_LANE)))
    a("v_lshlrev_b32 %s, 6, %s" % (vr(T + 1), vr(T + 1)))
    a("v_lshl_add_u32 %s, %s, 4, %s" % (vr(VD), vr(T), vr(T + 1)))
    a("s_lshl_b32 %s, %s, 21" % (sr(S_DOFF), sr(S_TMP)))
    a("s_lshl_b32 %s, %s, 17" % (sr(S_TMP), sr(S_HEAD)))
    a("s_add_u32 %s, %s, %s" % (sr(S_DOFF), sr(S_DOFF), sr(S_TMP)))
    a("s_lshr_b32 %s, %s, 2" % (sr(S_TMP), sr(S_WAVE)))
    a("s_lshl_b32 %s, %s, 16" % (sr(S_TMP), sr(S_TMP)))
    a("s_add_u32 %s, %s, %s" % (sr(S_DOFF), sr(S_DOFF), sr(S_TMP)))
    a("s_and_b32 %s, %s, 1" % (sr(S_TMP), sr(S_WAVE)))
    a("s_lshl_b32 %s, %s, 12" % (sr(S_TMP), sr(S_TMP)))
    a("s_add_u32 %s, %s, %s" % (sr(S_DOFF), sr(S_DOFF), sr(S_TMP)))
    a("s_lshl_b32 %s, %s, 12" % (sr(S_M0), sr(S_WAVE)))

    def dma(t):
        for i in range(4):
            a("s_add_u32 %s, %s, 0x%x" % (sr(S_TMP), sr(S_DOFF), t * 8192 + i * 1024))
            a("s_add_u32 m0, %s, 0x%x" % (sr(S_M0), (t % 3) * STAGE + i * 1024))
            a.vm("buffer_load_dwordx4 %s, %s, %s offen lds" % (vr(VD), sr(S_KV, 4), sr(S_TMP)), tag="d%d" % t)

    dma(0)
    dma(1)
    dma(2)

    a("s_and_b32 %s, %s, 3" % (sr(S_TMP), sr(S_WAVE)))
    a("s_lshl_b32 %s, %s, 5" % (sr(S_TMP), sr(S_TMP)))
    a("s_lshl_b32 %s, %s, 7" % (sr(S_T2), sr(S_QB)))
    a("s_add_u32 %s, %s, %s" % (sr(S_TMP), sr(S_TMP), sr(S_T2)))
    a("v_and_b32 %s, 31, %s" % (vr(V_Q), vr(V_LANE)))
    a("v_add_u32 %s, %s, %s" % (vr(V_Q), sr(S_TMP), vr(V_Q)))
    a("v_lshlrev_b32 %s, 6, %s" % (vr(T), vr(V_Q)))
    a("v_lshrrev_b32 %s, 5, %s" % (vr(T + 1), vr(V_LANE)))
    a("v_lshl_add_u32 %s, %s, 4, %s" % (vr(T), vr(T + 1), vr(T)))
    a("s_lshl_b32 %s, %s, 17" % (sr(S_T2), sr(S_HEAD)))
    a.vm("buffer_load_dwordx4 %s, %s, %s, %s offen" % (vr(Q, 4), vr(T), sr(S_QS, 4), sr(S_T2)), tag="q")
    a.vm("buffer_load_dwordx4 %s, %s, %s, %s offen offset:32" % (vr(Q + 4, 4), vr(T), sr(S_QS, 4), sr(S_T2)), tag="q")

    a("s_lshr_b32 %s, %s, 2" % (sr(S_TMP), sr(S_WAVE)))
    a("s_lshl_b32 %s, %s, 14" % (sr(S_TMP), sr(S_TMP)))
    a("v_and_b32 %s, 31, %s" % (vr(T), vr(V_LANE)))
    a("v_bfe_u32 %s, %s, 1, 2" % (vr(T + 1), vr(V_LANE)))
    a("v_lshrrev_b32 %s, 5, %s" % (vr(T + 2), vr(V_LANE)))
    a("v_xor_b32 %s, %s, %s" % (vr(T + 1), vr(T + 1), vr(T + 2)))
    a("v_lshlrev_b32 %s, 6, %s" % (vr(T), vr(T)))
    a("v_lshl_add_u32 %s, %s, 4, %s" % (vr(T), vr(T + 1), vr(T)))
    a("v_add_u32 %s, %s, %s" % (vr(KA[0]), sr(S_TMP), vr(T)))
    a("v_xor_b32 %s, 32, %s" % (vr(KA[1]), vr(KA[0])))
    a("v_add_u32 %s, 0x10000, %s" % (vr(KA[0] + 1), vr(KA[0])))
    a("v_add_u32 %s, 0x10000, %s" % (vr(KA[1] + 1), vr(KA[1])))
    a("v_bfe_u32 %s, %s, 2, 2" % (vr(T), vr(V_LANE)))
    a("v_lshl_add_u32 %s, %s, 2, %s" % (vr(T), vr(T + 2), vr(T)))
    a("v_lshlrev_b32 %s, 6, %s" % (vr(T), vr(T)))
    a("v_bfe_u32 %s, %s, 4, 1" % (vr(T + 1), vr(V_LANE)))
    a("v_lshl_add_u32 %s, %s, 5, %s" % (vr(T), vr(T + 1), vr(T)))
    a("v_and_b32 %s, 3, %s" % (vr(T + 1), vr(V_LANE)))
    a("v_lshl_add_u32 %s, %s, 3, %s" % (vr(T), vr(T + 1), vr(T)))
    a("s_add_u32 %s, %s, 8192" % (sr(S_TMP), sr(S_TMP)))
    a("v_add_u32 %s, %s, %s" % (vr(VA), sr(S_TMP), vr(T)))
    a("v_add_u32 %s, 0x10000, %s" % (vr(VA + 1), vr(VA)))
    a("v_mov_b32 %s, 0xff800000" % vr(M))
    for i in range(16):
        a("v_mov_b32 %s, 0" % vr(O + i))

    def stage_off(st):
        s3 = st % 3
        return (1, (s3 - 2) * STAGE) if s3 == 2 else (0, s3 * STAGE)

    def kreads(b):
        st, t0 = b >> 1, 2 * (b & 1)
        sel, off = stage_off(st)
        for t in range(2):
            for m in range(2):
                a.lg("ds_read_b128 %s, %s offset:%d" % (vr(KF[b & 1] + 8 * t + 4 * m, 4), vr(KA[m] + sel), off + (t0 + t) * 2048), tag="k%d" % b)

    def vreads(b):
        st, t0 = b >> 1, 2 * (b & 1)
        sel, off = stage_off(st)
        for t in range(2):
            for j in range(2):
                for kk in range(2):
                    a.lg("ds_read_b64_tr_b16 %s, %s offset:%d" % (vr(VF[b & 1] + 8 * t + 4 * j + 2 * kk, 2), vr(VA + sel),
                                                                   off + (t0 + t) * 2048 + j * 1024 + kk * 512), tag="v%d" % b)

    def barrier(t):
        a.wait_vm("d%d" % t)
        a("s_barrier")
        if 3 <= t + 1 < 8:
            dma(t + 1)

    def smfma(b):
        out = []
        for t in range(2):
            d = SS[b & 1] + 16 * t
            out.append("v_mfma_f32_32x32x16_bf16 %s, %s, %s, 0" % (vr(d, 16), vr(KF[b & 1] + 8 * t, 4), vr(Q, 4)))
            out.append("v_mfma_f32_32x32x16_bf16 %s, %s, %s, %s" % (vr(d, 16), vr(KF[b & 1] + 8 * t + 4, 4), vr(Q + 4, 4), vr(d, 16)))
        return out

    barrier(0)
    kreads(0)
    vreads(0)
    a.wait_vm("q")
    a.wait_lg("k0")
    for s in smfma(0):
        a(s)
    kreads(1)

    for b in range(16):
        Sc = SS[b & 1]
        if b + 2 < 16 and (b & 1) == 0:
            barrier((b + 2) >> 1)
        nxt = []
        if b + 1 < 16:
            a.wait_lg("k%d" % (b + 1))
            nxt = smfma(b + 1)
        if b == 0:
            a("s_nop 7")
            a("s_nop 7")
        if nxt:
            a(nxt[0])
        a("v_max3_f32 %s, %s, %s, %s" % (vr(T), vr(Sc), vr(Sc + 1), vr(Sc + 2)))
        a("v_max3_f32 %s, %s, %s, %s" % (vr(T + 1), vr(Sc + 3), vr(Sc + 4), vr(Sc + 5)))
        for i in range(3):
            a("v_max3_f32 %s, %s, %s, %s" % (vr(T), vr(T), vr(Sc + 6 + 4 * i), vr(Sc + 7 + 4 * i)))
            a("v_max3_f32 %s, %s, %s, %s" % (vr(T + 1), vr(T + 1), vr(Sc + 8 + 4 * i), vr(Sc + 9 + 4 * i)))
        if nxt:
            a(nxt[1])
        for i in range(3, 6):
            a("v_max3_f32 %s, %s, %s, %s" % (vr(T), vr(T), vr(Sc + 6 + 4 * i), vr(Sc + 7 + 4 * i)))
            a("v_max3_f32 %s, %s, %s, %s" % (vr(T + 1), vr(T + 1), vr(Sc + 8 + 4 * i), vr(Sc + 9 + 4 * i)))
        a("v_max3_f32 %s, %s, %s, %s" % (vr(T), vr(T), vr(Sc + 30), vr(Sc + 31)))
        a("v_max_f32 %s, %s, %s" % (vr(T), vr(T), vr(T + 1)))
        if nxt:
            a(nxt[2])
        a("v_mov_b32 %s, %s" % (vr(T + 1), vr(T)))
        a("s_nop 1")
        a("v_permlane32_swap_b32 %s, %s" % (vr(T), vr(T + 1)))
        a("s_nop 1")
        a("v_max3_f32 %s, %s, %s, %s" % (vr(T), vr(T), vr(T + 1), vr(M)))
        if nxt:
            a(nxt[3])
        if b + 2 < 16:
            kreads(b + 2)
        a("v_sub_f32 %s, %s, %s" % (vr(T + 2), vr(M), vr(T)))
        a("v_mul_f32 %s, %s, %s" % (vr(T + 2), sr(S_C), vr(T + 2)))
        a("v_exp_f32 %s, %s" % (vr(AL), vr(T + 2)))
        a("v_mov_b32 %s, %s" % (vr(M), vr(T)))
        a("v_mul_f32 %s, %s, %s" % (vr(NM), sr(S_C), vr(T)))
        a("v_sub_f32 %s, 0, %s" % (vr(NM), vr(NM)))
        a("v_mov_b32 %s, %s" % (vr(NM + 1), vr(NM)))
        a("v_mov_b32 %s, %s" % (vr(AL + 1), vr(AL)))
        if b + 1 < 16:
            vreads(b + 1)
        for t in range(2):
            s0 = Sc + 16 * t
            for i in range(8):
                a("v_pk_fma_f32 %s, %s, %s, %s" % (vr(s0 + 2 * i, 2), vr(s0 + 2 * i, 2), sr(S_C, 2), vr(NM, 2)))
            if t == 0:
                for i in range(8):
                    a("v_pk_mul_f32 %s, %s, %s" % (vr(O + 2 * i, 2), vr(O + 2 * i, 2), vr(AL, 2)))
            for i in range(16):
                a("v_exp_f32 %s, %s" % (vr(s0 + i), vr(s0 + i)))
            a("s_nop 0")
            for i in range(8):
                a("v_cvt_pk_bf16_f32 %s, %s, %s" % (vr(P + 8 * t + i), vr(s0 + 2 * i), vr(s0 + 2 * i + 1)))
            if t == 0:
                a.wait_lg("v%d" % b)
            a("s_nop 1")
            for j in range(2):
                a("v_mfma_f32_32x32x16_bf16 %s, %s, %s, %s" % (vr(O, 16), vr(VF[b & 1] + 8 * t + 4 * j, 4), vr(P + 8 * t + 4 * j, 4), vr(O, 16)))

    CB = 2 * STAGE
    a("s_nop 7")
    a("s_nop 7")
    a("s_and_b32 %s, %s, 3" % (sr(S_TMP), sr(S_WAVE)))
    a("s_mul_i32 %s, %s, %d" % (sr(S_TMP), sr(S_TMP), 17 * 256))
    a("s_add_u32 %s, %s, %d" % (sr(S_TMP), sr(S_TMP), CB))
    a("v_lshlrev_b32 %s, 2, %s" % (vr(T), vr(V_LANE)))
    a("v_add_u32 %s, %s, %s" % (vr(T), sr(S_TMP), vr(T)))
    Lhi = name + "_hi"
    a("s_cmp_lt_u32 %s, 4" % sr(S_WAVE))
    a("s_cbranch_scc1 %s" % Lhi)
    for i in range(16):
        a("ds_write_b32 %s, %s offset:%d" % (vr(T), vr(O + i), i * 256))
    a("ds_write_b32 %s, %s offset:%d" % (vr(T), vr(M), 16 * 256))
    a("s_waitcnt lgkmcnt(0)")
    a("s_barrier")
    a("s_branch %s" % Lend)
    a.label(Lhi)
    a("s_barrier")
    O2 = SS[0]
    M2 = T + 1
    for i in range(16):
        a("ds_read_b32 %s, %s offset:%d" % (vr(O2 + i), vr(T), i * 256))
    a("ds_read_b32 %s, %s offset:%d" % (vr(M2), vr(T), 16 * 256))
    a("s_waitcnt lgkmcnt(0)")
    mm, a1, a2 = T + 2, AL, NM
    a("v_max_f32 %s, %s, %s" % (vr(mm), vr(M), vr(M2)))
    a("v_sub_f32 %s, %s, %s" % (vr(a1), vr(M), vr(mm)))
    a("v_sub_f32 %s, %s, %s" % (vr(a2), vr(M2), vr(mm)))
    a("v_mul_f32 %s, %s, %s" % (vr(a1), sr(S_C), vr(a1)))
    a("v_mul_f32 %s, %s, %s" % (vr(a2), sr(S_C), vr(a2)))
    a("v_exp_f32 %s, %s" % (vr(a1), vr(a1)))
    a("v_exp_f32 %s, %s" % (vr(a2), vr(a2)))
    a("s_nop 0")
    for i in range(16):
        a("v_mul_f32 %s, %s, %s" % (vr(O + i), vr(O + i), vr(a1)))
        a("v_fmac_f32 %s, %s, %s" % (vr(O + i), vr(O2 + i), vr(a2)))
    a("v_mov_b32 %s, %s" % (vr(T + 2), vr(O + 12)))
    a("v_mov_b32 %s, %s" % (vr(T + 3), vr(O + 12)))
    a("s_nop 1")
    a("v_permlane32_swap_b32 %s, %s" % (vr(T + 2), vr(T + 3)))
    a("s_nop 1")
    a("v_rcp_f32 %s, %s" % (vr(T + 3), vr(T + 3)))
    a("s_nop 0")
    for i in range(16):
        a("v_mul_f32 %s, %s, %s" % (vr(O + i), vr(O + i), vr(T + 3)))
    for i in range(8):
        a("v_cvt_pk_bf16_f32 %s, %s, %s" % (vr(P + i), vr(O + 2 * i), vr(O + 2 * i + 1)))
    a("s_mul_i32 %s, %s, 28" % (sr(S_TMP), sr(S_HEAD)))
    a("v_lshrrev_b32 %s, 5, %s" % (vr(T), vr(V_LANE)))
    a("v_lshl_add_u32 %s, %s, 2, %s" % (vr(T), vr(T), sr(S_TMP)))
    a("v_lshrrev_b32 %s, 5, %s" % (vr(T + 1), vr(V_Q)))
    a("v_mul_u32_u24 %s, %d, %s" % (vr(T + 1), 28 * 1024, vr(T + 1)))
    a("v_and_b32 %s, 31, %s" % (vr(T + 2), vr(V_Q)))
    a("v_lshl_add_u32 %s, %s, 4, %s" % (vr(T + 1), vr(T + 2), vr(T + 1)))
    for i in range(8):
        rr = 8 * (i >> 1) + 2 * (i & 1)
        a("v_add_u32 %s, %d, %s" % (vr(T + 2), rr, vr(T)))
        a("v_lshrrev_b32 %s, 4, %s" % (vr(T + 3), vr(T + 2)))
        a("v_lshl_add_u32 %s, %s, 10, %s" % (vr(T + 3), vr(T + 3), vr(T + 1)))
        a("v_bfe_u32 %s, %s, 3, 1" % (vr(T + 4), vr(T + 2)))
        a("v_lshl_add_u32 %s, %s, 9, %s" % (vr(T + 3), vr(T + 4), vr(T + 3)))
        a("v_and_b32 %s, 7, %s" % (vr(T + 4), vr(T + 2)))
        a("v_lshl_add_u32 %s, %s, 1, %s" % (vr(T + 3), vr(T + 4), vr(T + 3)))
        if i == 6:
            a("s_mov_b32 exec_hi, 0")
        a.vm("buffer_store_dword %s, %s, %s, 0 offen" % (vr(P + i), vr(T + 3), sr(S_OS, 4)), tag="st")
        a("s_nop 0")
    a("s_waitcnt vmcnt(0)")
    a.label(Lend)
    a("s_endpgm")
    return a.text(), NV
```

```python
import sys
from asmlib import kernel_desc
import gemm
from gemm import *
from attn import attn_kernel
from down import down_kernel

HEADER = open("interleave_layers__mha_block__glu_gated_glu__prompt.s.ref").read().split("; Override launch")[0]

def assemble(kernels, launches, path):
    out = [HEADER.rstrip("\n")]
    for (n, g, b, l) in launches:
        out.append("; @launch kernel=%s grid=(%d,1,1) block=(%d,1,1) lds=%d" % (n, g, b, l))
    out.append('.amdgcn_target "amdgcn-amd-amdhsa--gfx950"')
    out.append(".text")
    for (n, t, nv) in kernels:
        out.append(t)
    out.append('.section .rodata,"a"')
    for (n, t, nv) in kernels:
        out.append(".p2align 6")
        out += kernel_desc(n, nv)
    open(path, "w").write("\n".join(out) + "\n")

def k_qkv(name, xsrc):
    t, nv = gemm_kernel(name, xsrc, True, [ARG_WQKV], 3*D, 96, 1, 16, 'qkv', headpad=True)
    return (name, t, nv), (name, 256, 256, 4*12288)

def k_oproj(name, res_src):
    t, nv = gemm_kernel(name, ('ws', WS_O), False, [ARG_WO], D, 32, 1, 14, 'res', res_src=res_src, dst=('ws', WS_XA))
    return (name, t, nv), (name, 224, 256, 4*4096)

def k_glu(name):
    t, nv = gemm_kernel(name, ('ws', WS_XA), True, [ARG_WG, ARG_WU], F, 64, 2, 14, 'glu')
    return (name, t, nv), (name, 224, 256, 4*16384)

def k_down(name, dst):
    t, nv = down_kernel(name, dst)
    return (name, t, nv), (name, 224, 256, 4*16384)

def k_attn(name):
    t, nv = attn_kernel(name)
    return (name, t, nv), (name, 256, 512, 3*32768)

if __name__ == "__main__":
    which = sys.argv[1]
    if which == "qkv":
        k, l = k_qkv("k_qkv1_kernel", ('arg', ARG_X))
    elif which == "oproj":
        k, l = k_oproj("k_oproj1_kernel", ('arg', ARG_X))
    elif which == "glu":
        k, l = k_glu("k_glu_kernel")
    elif which == "down":
        k, l = k_down("k_down1_kernel", ('ws', WS_XB))
    elif which == "attn":
        k, l = k_attn("k_attn_kernel")
    assemble([k], [l], "test_%s.s" % which)
    print("nvgpr", k[2])
```

```python
from asmlib import Asm, vr, sr
from gemm import (S, D, F, WS_H, WS_XA, ARG_WS, ARG_WD, emit_srd, magic_div, emit_epilogue)

NWG = 224


def down_kernel(name, dst):
    a = Asm()
    P, NT = 64, 2
    rowb = 128
    CH = 64
    half_bytes = CH * rowb
    chunk_bytes = 2 * half_bytes
    DEPTH = 4
    NCH = 14
    XD = 4
    ACC = 0
    XF = 32
    WF = 96
    T = 112
    V_LANE, V_TR, V_DMA, V_XOFF, V_TOK, V_E = 128, 129, 131, 135, 136, 140
    NV = V_E + 12
    S_X, S_W, S_O, S_R = 8, 12, 20, 24
    S_PW, S_PWS, S_PO = 28, 30, 32
    S_WAVE, S_TB, S_NT, S_WQ, S_KOFF, S_TMP, S_N0, S_TBW, S_T2, S_T3 = 36, 37, 38, 39, 40, 42, 43, 48, 49, 41

    a.raw("; ---- %s" % name)
    a.raw(".globl %s" % name)
    a.raw(".p2align 8")
    a.raw(".type %s,@function" % name)
    a.label(name)
    Lend = name + "_end"
    a("s_cmp_ge_u32 s2, %d" % NWG)
    a("s_cbranch_scc1 %s" % Lend)
    a("s_load_dwordx2 %s, s[0:1], %d" % (sr(S_PW, 2), ARG_WD * 8))
    a("s_load_dwordx2 %s, s[0:1], %d" % (sr(S_PWS, 2), ARG_WS * 8))
    if dst[0] == 'arg':
        a("s_load_dwordx2 %s, s[0:1], %d" % (sr(S_PO, 2), dst[1] * 8))
    a("v_and_b32 %s, 63, v0" % vr(V_LANE))
    a("v_lshrrev_b32 %s, 6, v0" % vr(T))
    a("s_and_b32 %s, s2, 7" % sr(S_TB))
    a("s_lshl_b32 %s, %s, 2" % (sr(S_TB), sr(S_TB)))
    a("v_readfirstlane_b32 %s, %s" % (sr(S_WAVE), vr(T)))
    a("s_lshr_b32 %s, s2, 3" % sr(S_NT))
    a("s_and_b32 %s, %s, 3" % (sr(S_TMP), sr(S_NT)))
    a("s_add_u32 %s, %s, %s" % (sr(S_TB), sr(S_TB), sr(S_TMP)))
    a("s_lshr_b32 %s, %s, 2" % (sr(S_NT), sr(S_NT)))
    a("s_waitcnt lgkmcnt(0)")
    emit_srd(a, S_X, S_PWS, WS_H, S * F * 2)
    emit_srd(a, S_W, S_PW, 0, F * D * 2)
    if dst[0] == 'ws':
        emit_srd(a, S_O, S_PWS, dst[1], S * D * 2)
    else:
        emit_srd(a, S_O, S_PO, 0, S * D * 2)
    emit_srd(a, S_R, S_PWS, WS_XA, S * D * 2)
    a("s_lshl_b32 %s, %s, 1" % (sr(S_TBW), sr(S_TB)))
    a("s_and_b32 %s, %s, 1" % (sr(S_TMP), sr(S_WAVE)))
    a("s_add_u32 %s, %s, %s" % (sr(S_TBW), sr(S_TBW), sr(S_TMP)))
    a("s_lshl_b32 %s, %s, 5" % (sr(S_TMP), sr(S_TBW)))
    a("v_and_b32 %s, 31, %s" % (vr(V_TOK), vr(V_LANE)))
    a("v_add_u32 %s, %s, %s" % (vr(V_TOK), sr(S_TMP), vr(V_TOK)))
    a("s_mul_i32 %s, %s, 112" % (sr(S_TMP), sr(S_TBW)))
    a("s_lshr_b32 %s, %s, 1" % (sr(S_T2), sr(S_WAVE)))
    a("s_mul_i32 %s, %s, 56" % (sr(S_T3), sr(S_T2)))
    a("s_add_u32 %s, %s, %s" % (sr(S_TMP), sr(S_TMP), sr(S_T3)))
    a("s_lshl_b32 %s, %s, 10" % (sr(S_TMP), sr(S_TMP)))
    a("v_lshlrev_b32 %s, 4, %s" % (vr(V_XOFF), vr(V_LANE)))
    a("v_add_u32 %s, %s, %s" % (vr(V_XOFF), sr(S_TMP), vr(V_XOFF)))

    def xload(c):
        for s in range(4):
            a("s_mov_b32 %s, 0x%x" % (sr(S_T3), c * 4096))
            a.vm("buffer_load_dwordx4 %s, %s, %s, %s offen offset:%d" % (
                vr(XF + (c % XD) * 16 + 4 * s, 4), vr(V_XOFF), sr(S_X, 4), sr(S_T3), 1024 * s), tag="x%d" % c)

    mul, sh = magic_div(8, half_bytes // 16 + 64)
    a("s_lshl_b32 %s, %s, 6" % (sr(S_TMP), sr(S_WAVE)))
    for i in range(4):
        m = i // 2
        Lbase = (4 * i - m * 8) * 64
        v = V_DMA + i
        a("v_add_u32 %s, %s, %s" % (vr(v), sr(S_TMP), vr(V_LANE)))
        if Lbase:
            a("v_add_u32 %s, %d, %s" % (vr(v), Lbase, vr(v)))
        a("v_lshrrev_b32 %s, 3, %s" % (vr(T), vr(v)))
        a("v_and_b32 %s, 7, %s" % (vr(T + 1), vr(v)))
        a("v_bfe_u32 %s, %s, 1, 1" % (vr(T + 2), vr(T)))
        a("v_lshlrev_b32 %s, 2, %s" % (vr(T + 2), vr(T + 2)))
        a("v_xor_b32 %s, %s, %s" % (vr(T + 1), vr(T + 1), vr(T + 2)))
        a("v_mul_u32_u24 %s, %d, %s" % (vr(v), D * 2, vr(T)))
        a("v_lshl_add_u32 %s, %s, 4, %s" % (vr(v), vr(T + 1), vr(v)))
        if m:
            a("v_add_u32 %s, 0x%x, %s" % (vr(v), 896 * D * 2, vr(v)))
    a("s_lshl_b32 %s, %s, 6" % (sr(S_N0), sr(S_NT)))
    a("s_lshl_b32 %s, %s, 1" % (sr(S_KOFF), sr(S_N0)))
    a("s_lshl_b32 %s, %s, 10" % (sr(S_WQ), sr(S_WAVE)))
    a("v_lshrrev_b32 %s, 5, %s" % (vr(T), vr(V_LANE)))
    a("v_lshlrev_b32 %s, 3, %s" % (vr(T), vr(T)))
    a("v_bfe_u32 %s, %s, 2, 2" % (vr(T + 1), vr(V_LANE)))
    a("v_add_u32 %s, %s, %s" % (vr(T), vr(T), vr(T + 1)))
    a("v_mul_u32_u24 %s, %d, %s" % (vr(V_TR), rowb, vr(T)))
    a("s_lshl_b32 %s, %s, 13" % (sr(S_T2), sr(S_T2)))
    a("v_add_u32 %s, %s, %s" % (vr(V_TR), sr(S_T2), vr(V_TR)))
    a("v_bfe_u32 %s, %s, 4, 1" % (vr(T + 2), vr(V_LANE)))
    a("v_lshlrev_b32 %s, 5, %s" % (vr(T + 2), vr(T + 2)))
    a("v_and_b32 %s, 3, %s" % (vr(T + 3), vr(V_LANE)))
    a("v_lshl_add_u32 %s, %s, 3, %s" % (vr(T + 2), vr(T + 3), vr(T + 2)))
    a("v_bfe_u32 %s, %s, 3, 1" % (vr(T + 3), vr(V_LANE)))
    a("v_lshlrev_b32 %s, 6, %s" % (vr(T + 3), vr(T + 3)))
    a("v_add3_u32 %s, %s, %s, %s" % (vr(V_TR + 1), vr(V_TR), vr(T + 2), vr(T + 3)))
    a("v_sub_u32 %s, %s, %s" % (vr(T + 3), vr(T + 2), vr(T + 3)))
    a("v_add_u32 %s, %s, %s" % (vr(V_TR), vr(V_TR), vr(T + 3)))

    def dma_chunk(c):
        slot = c % DEPTH
        for i in range(4):
            a("s_add_u32 %s, %s, 0x%x" % (sr(S_TMP), sr(S_KOFF), c * CH * D * 2))
            a("s_add_u32 m0, %s, %d" % (sr(S_WQ), slot * chunk_bytes + i * 4096))
            a.vm("buffer_load_dwordx4 %s, %s, %s offen lds" % (vr(V_DMA + i), sr(S_W, 4), sr(S_TMP)), tag="w%d" % c)

    def tr_reads(c, s, buf):
        slot = c % DEPTH
        for j in range(NT):
            dstv = WF + (buf * NT + j) * 4
            for kk in range(2):
                off = slot * chunk_bytes + (16 * s + 4 * kk) * rowb + 64 * j
                base = V_TR + 1 if j % 2 == 0 else V_TR
                a.lg("ds_read_b64_tr_b16 %s, %s offset:%d" % (vr(dstv + 2 * kk, 2), vr(base), off), tag="f%d_%d" % (c, s))

    dma_chunk(0)
    xload(0)
    dma_chunk(1)
    xload(1)

    def boundary(c):
        a.wait_vm("w%d" % c)
        a("s_barrier")
        if c + 2 < NCH:
            dma_chunk(c + 2)
            xload(c + 2)

    steps = [(c, s) for c in range(NCH) for s in range(4)]
    boundary(0)
    tr_reads(0, 0, 0)
    for idx, (c, s) in enumerate(steps):
        buf = idx % 2
        if idx + 1 < len(steps):
            c2, s2 = steps[idx + 1]
            if s2 == 0:
                boundary(c2)
            tr_reads(c2, s2, 1 - buf)
        if s == 0:
            a.wait_vm("x%d" % c)
        a.wait_lg("f%d_%d" % (c, s))
        for t in range(NT):
            acc = ACC + 16 * t
            a("v_mfma_f32_32x32x16_bf16 %s, %s, %s, %s" % (
                vr(acc, 16), vr(WF + (buf * NT + t) * 4, 4), vr(XF + (c % XD) * 16 + 4 * s, 4), "0" if idx == 0 else vr(acc, 16)))
    a("s_nop 15")
    a("s_nop 3")
    a("s_barrier")
    a("s_and_b32 %s, %s, 1" % (sr(S_TMP), sr(S_WAVE)))
    a("s_lshl_b32 %s, %s, 13" % (sr(S_TMP), sr(S_TMP)))
    a("v_lshlrev_b32 %s, 4, %s" % (vr(T), vr(V_LANE)))
    a("v_add_u32 %s, %s, %s" % (vr(T), sr(S_TMP), vr(T)))
    Llo = name + "_lo"
    a("s_cmp_lt_u32 %s, 2" % sr(S_WAVE))
    a("s_cbranch_scc1 %s" % Llo)
    for i in range(8):
        a("ds_write_b128 %s, %s offset:%d" % (vr(T), vr(ACC + 4 * i, 4), i * 1024))
    a("s_waitcnt lgkmcnt(0)")
    a("s_barrier")
    a("s_branch %s" % Lend)
    a.label(Llo)
    a("s_barrier")
    for i in range(8):
        a("ds_read_b128 %s, %s offset:%d" % (vr(XF + 4 * i, 4), vr(T), i * 1024))
    a("s_waitcnt lgkmcnt(0)")
    for i in range(32):
        a("v_add_f32 %s, %s, %s" % (vr(ACC + i), vr(ACC + i), vr(XF + i)))
    R = dict(ACC=ACC, NT=NT, NW=1, P=P, V_E=V_E, T=T, V_TOK=V_TOK, V_LANE=V_LANE, V_RSTD=0, S_O=S_O, S_R=S_R,
             S_N0=S_N0, S_TMP=S_T3, S_T2=S_T2, S_TBW=S_TBW, S_NT=S_NT, ln=False, res_src=('ws', WS_XA), dst=dst, passes=1)
    emit_epilogue(a, 'res', 0, R)
    a("s_waitcnt vmcnt(0)")
    a.label(Lend)
    a("s_endpgm")
    return a.text(), NV
```

```python
from asmlib import Asm, vr, sr

S = 2048
D = 448
F = 1792
NH = 16
DH = 28

MB = 1 << 20
WS_Q = 0 * MB
WS_K = 2 * MB
WS_V = 4 * MB
WS_O = 6 * MB
WS_XA = 8 * MB
WS_H = 10 * MB
WS_XB = 18 * MB

ARG_X, ARG_WQKV, ARG_WO, ARG_BX, ARG_WG, ARG_WU, ARG_WD, ARG_OUT, ARG_DBG, ARG_WS = range(10)


def magic_div(d, maxn):
    for sh in range(8, 31):
        mul = ((1 << sh) + d - 1) // d
        if mul >= (1 << 24):
            continue
        if all(((n * mul) >> sh) == n // d for n in range(maxn)) and (maxn * mul) < (1 << 32):
            return mul, sh
    raise ValueError


def emit_srd(a, dst, base_sgpr_pair, add_bytes, size):
    if add_bytes:
        a("s_add_u32 %s, %s, 0x%x" % (sr(dst), sr(base_sgpr_pair), add_bytes))
        a("s_addc_u32 %s, %s, 0" % (sr(dst + 1), sr(base_sgpr_pair + 1)))
    else:
        a("s_mov_b32 %s, %s" % (sr(dst), sr(base_sgpr_pair)))
        a("s_mov_b32 %s, %s" % (sr(dst + 1), sr(base_sgpr_pair + 1)))
    a("s_mov_b32 %s, 0x%x" % (sr(dst + 2), size))
    a("s_mov_b32 %s, 0x20000" % sr(dst + 3))


def bf16_round_scalar(a, dst, src, tmp=None):
    a("v_cvt_pk_bf16_f32 %s, %s, %s" % (vr(dst), vr(src), vr(src)))
    a("v_lshlrev_b32 %s, 16, %s" % (vr(dst), vr(dst)))


def emit_ln_prologue(a, XB, NFR, T, rstd):
    nreg = NFR * 4
    ones, s0, s1, t = T, T + 1, T + 2, T + 3
    a("v_mov_b32 %s, 0x3f803f80" % vr(ones))
    a("v_mov_b32 %s, 0" % vr(s0))
    a("v_mov_b32 %s, 0" % vr(s1))
    for i in range(nreg):
        acc = s0 if i % 2 == 0 else s1
        a("v_dot2_f32_bf16 %s, %s, %s, %s" % (vr(acc), vr(XB + i), vr(ones), vr(acc)))
    a("s_nop 3")
    a("v_add_f32 %s, %s, %s" % (vr(s0), vr(s0), vr(s1)))
    a("v_mov_b32 %s, %s" % (vr(t), vr(s0)))
    a("s_nop 1")
    a("v_permlane32_swap_b32 %s, %s" % (vr(t), vr(s0)))
    a("s_nop 1")
    a("v_add_f32 %s, %s, %s" % (vr(s0), vr(s0), vr(t)))
    mu, mb, nmb0, nmb1, q0, q1 = T + 4, T + 5, T + 6, T + 7, T + 8, T + 9
    a("v_mul_f32 %s, 0x%08x, %s" % (vr(mu), f32bits(1.0 / D), vr(s0)))
    bf16_round_scalar(a, mb, mu)
    a("v_sub_f32 %s, 0, %s" % (vr(nmb0), vr(mb)))
    a("v_mov_b32 %s, %s" % (vr(nmb1), vr(nmb0)))
    a("v_mov_b32 %s, 0" % vr(q0))
    a("v_mov_b32 %s, 0" % vr(q1))
    lo, hi = T + 10, T + 11
    for i in range(nreg):
        x = XB + i
        a("v_lshlrev_b32 %s, 16, %s" % (vr(lo), vr(x)))
        a("v_and_b32 %s, 0xffff0000, %s" % (vr(hi), vr(x)))
        a("v_pk_add_f32 %s, %s, %s" % (vr(lo, 2), vr(lo, 2), vr(nmb0, 2)))
        a("v_pk_fma_f32 %s, %s, %s, %s" % (vr(q0, 2), vr(lo, 2), vr(lo, 2), vr(q0, 2)))
        a("v_cvt_pk_bf16_f32 %s, %s, %s" % (vr(x), vr(lo), vr(hi)))
    a("v_add_f32 %s, %s, %s" % (vr(q0), vr(q0), vr(q1)))
    a("v_mov_b32 %s, %s" % (vr(t), vr(q0)))
    a("s_nop 1")
    a("v_permlane32_swap_b32 %s, %s" % (vr(t), vr(q0)))
    a("s_nop 1")
    a("v_add_f32 %s, %s, %s" % (vr(q0), vr(q0), vr(t)))
    a("v_sub_f32 %s, %s, %s" % (vr(t), vr(mu), vr(mb)))
    a("v_mul_f32 %s, %s, %s" % (vr(t), vr(t), vr(t)))
    a("v_mul_f32 %s, 0x%08x, %s" % (vr(q0), f32bits(1.0 / D), vr(q0)))
    a("v_sub_f32 %s, %s, %s" % (vr(q0), vr(q0), vr(t)))
    bf16_round_scalar(a, q0, q0)
    a("v_add_f32 %s, 0x%08x, %s" % (vr(q0), f32bits(1e-5), vr(q0)))
    bf16_round_scalar(a, q0, q0)
    a("v_sqrt_f32 %s, %s" % (vr(q0), vr(q0)))
    a("s_nop 0")
    bf16_round_scalar(a, q0, q0)
    a("v_rcp_f32 %s, %s" % (vr(rstd), vr(q0)))
    a("s_nop 0")


def f32bits(x):
    import struct
    return struct.unpack("<I", struct.pack("<f", x))[0]


import os
STOP = os.environ.get("GSTOP", "")


def tiled_base_regs(a, vdst, v_lane, s_tokblk, KS, s_tmp):
    a("s_mul_i32 %s, %s, %d" % (sr(s_tmp), sr(s_tokblk), KS * 1024))
    a("v_lshlrev_b32 %s, 4, %s" % (vr(vdst), vr(v_lane)))
    a("v_add_u32 %s, %s, %s" % (vr(vdst), sr(s_tmp), vr(vdst)))


def gemm_kernel(name, x_src, ln, w_args, nrow, P, passes, nwg_n, epi, res_src=None, dst=None, headpad=False):
    a = Asm()
    NW = len(w_args)
    NT = P // 32
    NTT = NT * NW
    rowb = P * 2
    CH = 64
    mat_bytes = CH * rowb
    chunk_bytes = mat_bytes * NW
    NQ = chunk_bytes // 1024
    NQW = NQ // 4
    assert NQ % 4 == 0 and mat_bytes % 1024 == 0
    DEPTH = 4
    NCH = 7 * passes
    NWG = 16 * nwg_n
    CPR = P // 8
    swz = (rowb % 256) not in (64, 192)
    if swz:
        assert rowb == 128

    XB = 0
    ACC = 112
    WF = ACC + NTT * 16
    T = WF + 2 * NTT * 4
    T = (T + 1) // 2 * 2
    V_LANE = T + 16
    V_TR = T + 17
    V_DMA = T + 19
    V_XOFF = V_DMA + NQW
    V_RSTD = V_XOFF + 1
    V_TOK = V_RSTD + 1
    V_E = V_TOK + 1
    V_E = (V_E + 3) // 4 * 4
    NV = V_E + 12

    S_X, S_W0, S_W1, S_O, S_R = 8, 12, 16, 20, 24
    S_PX, S_PW0, S_PW1, S_PWS = 28, 30, 32, 34
    S_WAVE, S_TB, S_NT, S_WQ, S_KOFF0, S_KOFF1, S_TMP, S_N0 = 36, 37, 38, 39, 40, 41, 42, 43
    S_PR, S_PO, S_TBW, S_T2 = 44, 46, 48, 49

    a.raw("; ---- %s" % name)
    a.raw(".globl %s" % name)
    a.raw(".p2align 8")
    a.raw(".type %s,@function" % name)
    a.label(name)
    Lend = name + "_end"
    a("s_cmp_ge_u32 s2, %d" % NWG)
    a("s_cbranch_scc1 %s" % Lend)
    xa = x_src[1] if x_src[0] == 'arg' else ARG_WS
    a("s_load_dwordx2 %s, s[0:1], %d" % (sr(S_PX, 2), xa * 8))
    a("s_load_dwordx2 %s, s[0:1], %d" % (sr(S_PW0, 2), w_args[0] * 8))
    if NW > 1:
        a("s_load_dwordx2 %s, s[0:1], %d" % (sr(S_PW1, 2), w_args[1] * 8))
    a("s_load_dwordx2 %s, s[0:1], %d" % (sr(S_PWS, 2), ARG_WS * 8))
    if epi == 'res':
        ra = res_src[1] if res_src[0] == 'arg' else ARG_WS
        a("s_load_dwordx2 %s, s[0:1], %d" % (sr(S_PR, 2), ra * 8))
        if dst[0] == 'arg':
            a("s_load_dwordx2 %s, s[0:1], %d" % (sr(S_PO, 2), dst[1] * 8))
    a("v_and_b32 %s, 63, v0" % vr(V_LANE))
    a("v_lshrrev_b32 %s, 6, v0" % vr(T))
    a("s_and_b32 %s, s2, 7" % sr(S_TB))
    a("s_lshl_b32 %s, %s, 1" % (sr(S_TB), sr(S_TB)))
    a("v_readfirstlane_b32 %s, %s" % (sr(S_WAVE), vr(T)))
    a("s_lshr_b32 %s, s2, 3" % sr(S_NT))
    a("s_and_b32 %s, %s, 1" % (sr(S_TMP), sr(S_NT)))
    a("s_add_u32 %s, %s, %s" % (sr(S_TB), sr(S_TB), sr(S_TMP)))
    a("s_lshr_b32 %s, %s, 1" % (sr(S_NT), sr(S_NT)))
    a("s_waitcnt lgkmcnt(0)")
    emit_srd(a, S_X, S_PX, x_src[1] if x_src[0] == 'ws' else 0, S * D * 2)
    emit_srd(a, S_W0, S_PW0, 0, D * nrow * 2)
    if NW > 1:
        emit_srd(a, S_W1, S_PW1, 0, D * nrow * 2)
    if epi == 'qkv':
        emit_srd(a, S_O, S_PWS, WS_Q, 3 * NH * S * 64)
    elif epi == 'res':
        if dst[0] == 'ws':
            emit_srd(a, S_O, S_PWS, dst[1], S * D * 2)
        else:
            emit_srd(a, S_O, S_PO, 0, S * D * 2)
        emit_srd(a, S_R, S_PR, res_src[1] if res_src[0] == 'ws' else 0, S * D * 2)
    elif epi == 'glu':
        emit_srd(a, S_O, S_PWS, WS_H, S * F * 2)

    a("s_lshl_b32 %s, %s, 2" % (sr(S_TBW), sr(S_TB)))
    a("s_add_u32 %s, %s, %s" % (sr(S_TBW), sr(S_TBW), sr(S_WAVE)))
    a("s_lshl_b32 %s, %s, 5" % (sr(S_TMP), sr(S_TBW)))
    a("v_and_b32 %s, 31, %s" % (vr(V_TOK), vr(V_LANE)))
    a("v_add_u32 %s, %s, %s" % (vr(V_TOK), sr(S_TMP), vr(V_TOK)))
    if x_src[0] == 'arg':
        a("v_mul_u32_u24 %s, %d, %s" % (vr(V_XOFF), D * 2, vr(V_TOK)))
        a("v_lshrrev_b32 %s, 5, %s" % (vr(T), vr(V_LANE)))
        a("v_lshlrev_b32 %s, 4, %s" % (vr(T), vr(T)))
        a("v_add_u32 %s, %s, %s" % (vr(V_XOFF), vr(V_XOFF), vr(T)))
        for ks in range(28):
            a.vm("buffer_load_dwordx4 %s, %s, %s, 0 offen offset:%d" % (vr(XB + 4 * ks, 4), vr(V_XOFF), sr(S_X, 4), 32 * ks), tag="x")
    else:
        tiled_base_regs(a, V_XOFF, V_LANE, S_TBW, 28, S_TMP)
        for ks in range(28):
            if ks % 4 == 0 and ks:
                a("v_add_u32 %s, 4096, %s" % (vr(V_XOFF), vr(V_XOFF)))
            a.vm("buffer_load_dwordx4 %s, %s, %s, 0 offen offset:%d" % (vr(XB + 4 * ks, 4), vr(V_XOFF), sr(S_X, 4), 1024 * (ks % 4)), tag="x")

    mul, sh = magic_div(CPR, mat_bytes // 16 + 64)
    QPM = NQ // NW
    a("s_lshl_b32 %s, %s, 6" % (sr(S_TMP), sr(S_WAVE)))
    for i in range(NQW):
        assert QPM % 4 == 0 or NW == 1
        m = (4 * i) // QPM
        Lbase = (4 * i - m * QPM) * 64
        v = V_DMA + i
        a("v_add_u32 %s, %s, %s" % (vr(v), sr(S_TMP), vr(V_LANE)))
        if Lbase:
            a("v_add_u32 %s, %d, %s" % (vr(v), Lbase, vr(v)))
        a("v_mul_u32_u24 %s, %d, %s" % (vr(T), mul, vr(v)))
        a("v_lshrrev_b32 %s, %d, %s" % (vr(T), sh, vr(T)))
        a("v_mul_u32_u24 %s, %d, %s" % (vr(T + 1), CPR, vr(T)))
        a("v_sub_u32 %s, %s, %s" % (vr(T + 1), vr(v), vr(T + 1)))
        if swz:
            a("v_lshrrev_b32 %s, 1, %s" % (vr(T + 2), vr(T)))
            a("v_and_b32 %s, 1, %s" % (vr(T + 2), vr(T + 2)))
            a("v_lshlrev_b32 %s, 2, %s" % (vr(T + 2), vr(T + 2)))
            a("v_xor_b32 %s, %s, %s" % (vr(T + 1), vr(T + 1), vr(T + 2)))
        a("v_mul_u32_u24 %s, %d, %s" % (vr(v), nrow * 2, vr(T)))
        if headpad:
            a("v_lshrrev_b32 %s, 2, %s" % (vr(T + 2), vr(T + 1)))
            a("v_mul_u32_u24 %s, 56, %s" % (vr(T + 2), vr(T + 2)))
            a("v_and_b32 %s, 3, %s" % (vr(T + 1), vr(T + 1)))
            a("v_lshl_add_u32 %s, %s, 4, %s" % (vr(T + 2), vr(T + 1), vr(T + 2)))
            a("v_add_u32 %s, %s, %s" % (vr(v), vr(v), vr(T + 2)))
        else:
            a("v_lshl_add_u32 %s, %s, 4, %s" % (vr(v), vr(T + 1), vr(v)))
    a("s_mul_i32 %s, %s, %d" % (sr(S_N0), sr(S_NT), P * passes))
    if headpad:
        a("s_mul_i32 %s, %s, %d" % (sr(S_KOFF0), sr(S_NT), 28 * NT * passes * 2))
    else:
        a("s_lshl_b32 %s, %s, 1" % (sr(S_KOFF0), sr(S_N0)))
    a("s_lshl_b32 %s, %s, 10" % (sr(S_WQ), sr(S_WAVE)))

    a("v_lshrrev_b32 %s, 5, %s" % (vr(T), vr(V_LANE)))
    a("v_lshlrev_b32 %s, 3, %s" % (vr(T), vr(T)))
    a("v_bfe_u32 %s, %s, 2, 2" % (vr(T + 1), vr(V_LANE)))
    a("v_add_u32 %s, %s, %s" % (vr(T), vr(T), vr(T + 1)))
    a("v_mul_u32_u24 %s, %d, %s" % (vr(V_TR), rowb, vr(T)))
    a("v_bfe_u32 %s, %s, 4, 1" % (vr(T + 2), vr(V_LANE)))
    a("v_lshlrev_b32 %s, 5, %s" % (vr(T + 2), vr(T + 2)))
    a("v_and_b32 %s, 3, %s" % (vr(T + 3), vr(V_LANE)))
    a("v_lshl_add_u32 %s, %s, 3, %s" % (vr(T + 2), vr(T + 3), vr(T + 2)))
    if swz:
        a("v_bfe_u32 %s, %s, 3, 1" % (vr(T + 3), vr(V_LANE)))
        a("v_lshlrev_b32 %s, 6, %s" % (vr(T + 3), vr(T + 3)))
        a("v_add3_u32 %s, %s, %s, %s" % (vr(V_TR + 1), vr(V_TR), vr(T + 2), vr(T + 3)))
        a("v_sub_u32 %s, %s, %s" % (vr(T + 3), vr(T + 2), vr(T + 3)))
        a("v_add_u32 %s, %s, %s" % (vr(V_TR), vr(V_TR), vr(T + 3)))
    else:
        a("v_add_u32 %s, %s, %s" % (vr(V_TR), vr(V_TR), vr(T + 2)))

    def dma_chunk(c):
        slot = c % DEPTH
        ps, ck = c // 7, c % 7
        for i in range(NQW):
            m = (4 * i) // QPM
            srd = S_W0 if m == 0 else S_W1
            const = ck * CH * nrow * 2 + ps * (28 * NT * 2 if headpad else P * 2)
            a("s_add_u32 %s, %s, 0x%x" % (sr(S_TMP), sr(S_KOFF0), const))
            a("s_add_u32 m0, %s, %d" % (sr(S_WQ), slot * chunk_bytes + i * 4096))
            a.vm("buffer_load_dwordx4 %s, %s, %s offen lds" % (vr(V_DMA + i), sr(srd, 4), sr(S_TMP)), tag="w%d" % c)

    def tr_reads(c, s, buf):
        slot = c % DEPTH
        for m in range(NW):
            for j in range(NT):
                dstv = WF + (buf * NTT + m * NT + j) * 4
                for kk in range(2):
                    off = slot * chunk_bytes + m * mat_bytes + (16 * s + 4 * kk) * rowb
                    if swz:
                        base = V_TR + 1 if j % 2 == 0 else V_TR
                    else:
                        base = V_TR
                    off += 64 * j
                    a.lg("ds_read_b64_tr_b16 %s, %s offset:%d" % (vr(dstv + 2 * kk, 2), vr(base), off), tag="f%d_%d" % (c, s))

    for c in range(DEPTH - 2):
        dma_chunk(c)

    if STOP == "start":
        a("s_branch %s" % Lend)
    a.wait_vm("x")
    if STOP == "x":
        a("s_branch %s" % Lend)
    if ln:
        emit_ln_prologue(a, XB, 28, T, V_RSTD)
    if STOP == "ln":
        a("s_branch %s" % Lend)

    steps = [(c, s) for c in range(NCH) for s in range(4)]

    def boundary(c):
        a.wait_vm("w%d" % c)
        a("s_barrier")
        if c + DEPTH - 2 < NCH:
            dma_chunk(c + DEPTH - 2)

    R = dict(ACC=ACC, NT=NT, NW=NW, P=P, V_E=V_E, T=T, V_TOK=V_TOK, V_LANE=V_LANE, V_RSTD=V_RSTD, S_O=S_O, S_R=S_R,
             S_N0=S_N0, S_TMP=S_KOFF1, S_T2=S_T2, S_TBW=S_TBW, S_NT=S_NT, ln=ln, res_src=res_src, dst=dst, passes=passes)
    boundary(0)
    tr_reads(0, 0, 0)
    for idx, (c, s) in enumerate(steps):
        buf = idx % 2
        if idx + 1 < len(steps):
            c2, s2 = steps[idx + 1]
            if s2 == 0:
                boundary(c2)
            tr_reads(c2, s2, 1 - buf)
        a.wait_lg("f%d_%d" % (c, s))
        ks = (c % 7) * 4 + s
        first = (c % 7 == 0 and s == 0)
        for t in range(NTT):
            acc = ACC + 16 * t
            a("v_mfma_f32_32x32x16_bf16 %s, %s, %s, %s" % (
                vr(acc, 16), vr(WF + (buf * NTT + t) * 4, 4), vr(XB + 4 * ks, 4), "0" if first else vr(acc, 16)))
        if c % 7 == 6 and s == 3 and STOP != "noepi":
            emit_epilogue(a, epi, c // 7, R)
    a("s_waitcnt vmcnt(0)")
    a.label(Lend)
    a("s_endpgm")
    return a.text(), NV


def swap_pieces(a, pk):
    a("s_nop 1")
    a("v_permlane32_swap_b32 %s, %s" % (vr(pk + 0), vr(pk + 2)))
    a("v_permlane32_swap_b32 %s, %s" % (vr(pk + 1), vr(pk + 3)))
    a("v_permlane32_swap_b32 %s, %s" % (vr(pk + 4), vr(pk + 6)))
    a("v_permlane32_swap_b32 %s, %s" % (vr(pk + 5), vr(pk + 7)))
    a("s_nop 1")


def unpack2(a, dlo, dhi, src):
    a("v_lshlrev_b32 %s, 16, %s" % (vr(dlo), vr(src)))
    a("v_and_b32 %s, 0xffff0000, %s" % (vr(dhi), vr(src)))


def emit_epilogue(a, epi, ps, R):
    ACC, NT, NW, P = R['ACC'], R['NT'], R['NW'], R['P']
    E, V_TOK, V_LANE, V_RSTD = R['V_E'], R['V_TOK'], R['V_LANE'], R['V_RSTD']
    S_O, S_R, S_N0, S_TMP, S_T2, S_TBW, S_NT = R['S_O'], R['S_R'], R['S_N0'], R['S_TMP'], R['S_T2'], R['S_TBW'], R['S_NT']
    PK = R['T']
    AD = R['T'] + 8
    TM = E
    a("s_nop 15")
    a("s_nop 3")
    if epi == 'qkv':
        a("v_lshlrev_b32 %s, 6, %s" % (vr(AD), vr(V_TOK)))
        a("v_lshrrev_b32 %s, 5, %s" % (vr(TM), vr(V_LANE)))
        a("v_lshl_add_u32 %s, %s, 4, %s" % (vr(AD), vr(TM), vr(AD)))
        a("v_cmp_le_u32 vcc, 32, %s" % vr(V_LANE))
        for j in range(NT):
            for i in range(16):
                a("v_mul_f32 %s, %s, %s" % (vr(ACC + 16 * j + i), vr(ACC + 16 * j + i), vr(V_RSTD)))
            for q in range(4):
                r0 = ACC + 16 * j + 4 * q
                a("v_cvt_pk_bf16_f32 %s, %s, %s" % (vr(PK + 2 * q), vr(r0), vr(r0 + 1)))
                a("v_cvt_pk_bf16_f32 %s, %s, %s" % (vr(PK + 2 * q + 1), vr(r0 + 2), vr(r0 + 3)))
            swap_pieces(a, PK)
            a("s_mul_i32 %s, %s, %d" % (sr(S_TMP), sr(S_NT), NT))
            a("s_add_u32 %s, %s, %d" % (sr(S_TMP), sr(S_TMP), j))
            a("s_cmp_ge_u32 %s, 32" % sr(S_TMP))
            a("s_cselect_b32 %s, 0x3f80, 0" % sr(S_T2))
            a("s_lshl_b32 %s, %s, 17" % (sr(S_TMP), sr(S_TMP)))
            a("v_mov_b32 %s, %s" % (vr(TM), sr(S_T2)))
            a("v_mov_b32 %s, 0" % vr(TM + 1))
            a("v_cndmask_b32 %s, %s, %s, vcc" % (vr(PK + 6), vr(PK + 6), vr(TM)))
            a("v_cndmask_b32 %s, %s, %s, vcc" % (vr(PK + 7), vr(PK + 7), vr(TM + 1)))
            a.vm("buffer_store_dwordx4 %s, %s, %s, %s offen" % (vr(PK, 4), vr(AD), sr(S_O, 4), sr(S_TMP)), tag="st")
            a.vm("buffer_store_dwordx4 %s, %s, %s, %s offen offset:32" % (vr(PK + 4, 4), vr(AD), sr(S_O, 4), sr(S_TMP)), tag="st")
            a("s_nop 1")
    elif epi == 'res':
        res_tiled = R['res_src'][0] == 'ws'
        dst_tiled = R['dst'][0] == 'ws'
        RS = TM
        AR = AD + 1
        if res_tiled or dst_tiled:
            a("s_mul_i32 %s, %s, 28" % (sr(S_TMP), sr(S_TBW)))
            a("s_lshr_b32 %s, %s, 4" % (sr(S_T2), sr(S_N0)))
            a("s_add_u32 %s, %s, %s" % (sr(S_TMP), sr(S_TMP), sr(S_T2)))
            a("s_lshl_b32 %s, %s, 10" % (sr(S_TMP), sr(S_TMP)))
            a("v_lshlrev_b32 %s, 4, %s" % (vr(AD), vr(V_LANE)))
            a("v_add_u32 %s, %s, %s" % (vr(AD), sr(S_TMP), vr(AD)))
        if (not res_tiled) or (not dst_tiled):
            a("v_mul_u32_u24 %s, %d, %s" % (vr(AR), D * 2, vr(V_TOK)))
            a("v_lshrrev_b32 %s, 5, %s" % (vr(TM), vr(V_LANE)))
            a("v_lshl_add_u32 %s, %s, 4, %s" % (vr(AR), vr(TM), vr(AR)))
            a("s_lshl_b32 %s, %s, 1" % (sr(S_T2), sr(S_N0)))
            a("v_add_u32 %s, %s, %s" % (vr(AR), sr(S_T2), vr(AR)))
        for j in range(NT):
            for p in range(2):
                if res_tiled:
                    a.vm("buffer_load_dwordx4 %s, %s, %s, 0 offen offset:%d" % (vr(RS + 4 * p, 4), vr(AD), sr(S_R, 4), (ps * P // 16 + 2 * j + p) * 1024), tag="res%d" % p)
                else:
                    a.vm("buffer_load_dwordx4 %s, %s, %s, 0 offen offset:%d" % (vr(RS + 4 * p, 4), vr(AR), sr(S_R, 4), (ps * P + 32 * j + 16 * p) * 2), tag="res%d" % p)
            for q in range(4):
                r0 = ACC + 16 * j + 4 * q
                a("v_cvt_pk_bf16_f32 %s, %s, %s" % (vr(PK + 2 * q), vr(r0), vr(r0 + 1)))
                a("v_cvt_pk_bf16_f32 %s, %s, %s" % (vr(PK + 2 * q + 1), vr(r0 + 2), vr(r0 + 3)))
            swap_pieces(a, PK)
            for p in range(2):
                a.wait_vm("res%d" % p)
                for i in range(4):
                    t0 = ACC + 16 * j
                    unpack2(a, t0, t0 + 1, PK + 4 * p + i)
                    unpack2(a, t0 + 2, t0 + 3, RS + 4 * p + i)
                    a("v_add_f32 %s, %s, %s" % (vr(t0), vr(t0), vr(t0 + 2)))
                    a("v_add_f32 %s, %s, %s" % (vr(t0 + 1), vr(t0 + 1), vr(t0 + 3)))
                    a("v_cvt_pk_bf16_f32 %s, %s, %s" % (vr(PK + 4 * p + i), vr(t0), vr(t0 + 1)))
                if dst_tiled:
                    a.vm("buffer_store_dwordx4 %s, %s, %s, 0 offen offset:%d" % (vr(PK + 4 * p, 4), vr(AD), sr(S_O, 4), (ps * P // 16 + 2 * j + p) * 1024), tag="st")
                else:
                    a.vm("buffer_store_dwordx4 %s, %s, %s, 0 offen offset:%d" % (vr(PK + 4 * p, 4), vr(AR), sr(S_O, 4), (ps * P + 32 * j + 16 * p) * 2), tag="st")
            a("s_nop 1")
    elif epi == 'glu':
        a("s_mul_i32 %s, %s, 112" % (sr(S_TMP), sr(S_TBW)))
        a("s_lshr_b32 %s, %s, 4" % (sr(S_T2), sr(S_N0)))
        a("s_add_u32 %s, %s, %s" % (sr(S_TMP), sr(S_TMP), sr(S_T2)))
        if ps:
            a("s_add_u32 %s, %s, %d" % (sr(S_TMP), sr(S_TMP), ps * P // 16))
        a("s_lshl_b32 %s, %s, 10" % (sr(S_TMP), sr(S_TMP)))
        a("v_lshlrev_b32 %s, 4, %s" % (vr(AD), vr(V_LANE)))
        a("v_add_u32 %s, %s, %s" % (vr(AD), sr(S_TMP), vr(AD)))
        G, U = TM, TM + 4
        for j in range(NT):
            for q in range(4):
                g0 = ACC + 16 * j + 4 * q
                u0 = ACC + 16 * (NT + j) + 4 * q
                for i in range(4):
                    a("v_mul_f32 %s, %s, %s" % (vr(G + i), vr(g0 + i), vr(V_RSTD)))
                    a("v_mul_f32 %s, %s, %s" % (vr(U + i), vr(u0 + i), vr(V_RSTD)))
                for b in (G, U):
                    a("v_cvt_pk_bf16_f32 %s, %s, %s" % (vr(TM + 8), vr(b), vr(b + 1)))
                    a("v_cvt_pk_bf16_f32 %s, %s, %s" % (vr(TM + 9), vr(b + 2), vr(b + 3)))
                    unpack2(a, b, b + 1, TM + 8)
                    unpack2(a, b + 2, b + 3, TM + 9)
                for i in range(4):
                    a("v_mul_f32 %s, 0x%08x, %s" % (vr(G + i), f32bits(-1.4426950408889634), vr(G + i)))
                for i in range(4):
                    a("v_exp_f32 %s, %s" % (vr(G + i), vr(G + i)))
                a("s_nop 0")
                for i in range(4):
                    a("v_add_f32 %s, 1.0, %s" % (vr(G + i), vr(G + i)))
                for i in range(4):
                    a("v_rcp_f32 %s, %s" % (vr(G + i), vr(G + i)))
                a("s_nop 0")
                a("v_cvt_pk_bf16_f32 %s, %s, %s" % (vr(TM + 8), vr(G), vr(G + 1)))
                a("v_cvt_pk_bf16_f32 %s, %s, %s" % (vr(TM + 9), vr(G + 2), vr(G + 3)))
                unpack2(a, G, G + 1, TM + 8)
                unpack2(a, G + 2, G + 3, TM + 9)
                for i in range(4):
                    a("v_mul_f32 %s, %s, %s" % (vr(G + i), vr(G + i), vr(U + i)))
                a("v_cvt_pk_bf16_f32 %s, %s, %s" % (vr(PK + 2 * q), vr(G), vr(G + 1)))
                a("v_cvt_pk_bf16_f32 %s, %s, %s" % (vr(PK + 2 * q + 1), vr(G + 2), vr(G + 3)))
            swap_pieces(a, PK)
            for p in range(2):
                a.vm("buffer_store_dwordx4 %s, %s, %s, 0 offen offset:%d" % (vr(PK + 4 * p, 4), vr(AD), sr(S_O, 4), (2 * j + p) * 1024), tag="st")
            a("s_nop 1")
```

```python
from build import *
ks, ls = [], []
def add(kl, new=True):
    k, l = kl
    if new: ks.append(k)
    ls.append(l)
q1 = k_qkv("k_qkv1_kernel", ('arg', ARG_X)); q2 = k_qkv("k_qkv2_kernel", ('ws', WS_XB))
at = k_attn("k_attn_kernel")
o1 = k_oproj("k_oproj1_kernel", ('arg', ARG_X)); o2 = k_oproj("k_oproj2_kernel", ('ws', WS_XB))
gl = k_glu("k_glu_kernel")
d1 = k_down("k_down1_kernel", ('ws', WS_XB)); d2 = k_down("k_down2_kernel", ('arg', ARG_OUT))
add(q1); add(at); add(o1); add(gl); add(d1)
add(q2); add(at, False); add(o2); add(gl, False); add(d2)
assemble(ks, ls, "interleave_layers__mha_block__glu_gated_glu__prompt.s")
```
